```python
import torch

def _softmax(x, axis=-1):
    return torch.softmax(x, dim=axis)
def _gelu(x):
    return torch.nn.functional.gelu(x, approximate="tanh")
def _silu(x):
    return torch.nn.functional.silu(x)
def _sigmoid(x):
    return torch.sigmoid(x)
def _layernorm(x, axis=-1, eps=1e-5):
    m = x.mean(dim=axis, keepdim=True)
    v = x.var(dim=axis, keepdim=True, unbiased=False)
    return (x - m) / torch.sqrt(v + eps)
def _scatter_add(tgt, idx, src, axis=0):
    return tgt.clone().index_add_(axis, idx, src)
def _segment_sum(src, seg, n):
    out = torch.zeros((n,) + src.shape[1:], dtype=src.dtype)
    return out.index_add_(0, seg, src)
def _pad(x, pw):
    flat = tuple(v for pair in reversed(pw) for v in pair)
    return torch.nn.functional.pad(x, flat)

kernel_name = 'standalone__sliding_block_cached__sampling'

def setup_inputs():

    _w = (lambda a: (lambda t: t.to(torch.bfloat16) if t.is_floating_point() else t)(torch.as_tensor(a)))
    B, Sq, D = 16, 1, 512
    Hq, Hkv, Sk, Dh = 32, 8, 4096, 128
    assert Hq % Hkv == 0, (Hq, Hkv)
    return {
        "x": _w((lambda *s: torch.randn(*s, dtype=torch.bfloat16) * 0.8)(B, Sq, D)),
        "k_cache": _w((lambda *s: torch.randn(*s, dtype=torch.bfloat16) * 0.8)(B, Hkv, Sk, Dh)),
        "v_cache": _w((lambda *s: torch.randn(*s, dtype=torch.bfloat16) * 0.05)(B, Hkv, Sk, Dh)),
        "wq": _w((lambda *s: torch.randn(*s, dtype=torch.bfloat16) * 0.8)(D, Hq * Dh) * (D ** -0.5)),
        "wo": _w((lambda *s: torch.randn(*s, dtype=torch.bfloat16) * 0.05)(Hq * Dh, D) * ((Hq * Dh) ** -0.5)),
    }

def reference(x, k_cache, v_cache, wq, wo):
    B, Sq, D = x.shape
    Hq, Dh = 32, 128
    Hkv, Sk = k_cache.shape[1], k_cache.shape[2]
    W = min(4096, max(256, Sk // 4))
    rep = Hq // Hkv
    q = (lambda x, *d: x.permute(*d))((x @ wq).reshape(B, Sq, Hq, Dh), 0, 2, 1, 3)
    k = (lambda x, n, axis: torch.repeat_interleave(x, n, dim=axis))(k_cache[:, :, Sk - W:, :], rep, axis=1)
    v = (lambda x, n, axis: torch.repeat_interleave(x, n, dim=axis))(v_cache[:, :, Sk - W:, :], rep, axis=1)
    scores = torch.einsum("bhqd,bhkd->bhqk", q, k) * (Dh ** -0.5)
    p = _softmax(scores, axis=-1)
    o = torch.einsum("bhqk,bhkd->bhqd", p, v)
    return (lambda x, *d: x.permute(*d))(o, 0, 2, 1, 3).reshape(B, Sq, Hq * Dh) @ wo
```

```python
import sys, struct

NAME = 'standalone__sliding_block_cached__sampling_kernel'

HEADER = '''; Kernarg layout for this problem (64 bytes, ptrs only, base s[0:1]):
'''

Q_OFF, O_OFF, LSE_OFF, P_OFF, STAMP_OFF = 0x0, 0x20000, 0x60000, 0x80000, 0x1000000
L_WQ, L_WO, L_RED, L_MAX, L_SUM, L_END = 0, 16384, 32768, 36864, 37120, 37376
L_MRG = 0
SPIN_MAX = 400000


def f32(x):
    return '0x%08x' % struct.unpack('<I', struct.pack('<f', x))[0]


class G:
    def __init__(self):
        self.L = []
        self.vm = []
    def A(self, s):
        self.L.append('    ' + s)
    def label(self, s):
        self.L.append(s + ':')
    def C(self, s):
        self.L.append('    ; ' + s)
    def vmem(self, s, tag):
        self.A(s)
        self.vm.append(tag)
    def wait(self, tag):
        idx = max(i for i, t in enumerate(self.vm) if t == tag)
        n = len(self.vm) - 1 - idx
        assert n <= 63
        self.A(f's_waitcnt vmcnt({n})')


def gen(stamps=False, nt='nt', wnt='nt', xnt='', flag_at=24, flag_lag=4, out_sc=''):
    g = G(); A = g.A
    sX, sK, sV, sWQ, sWO, sOUT, sDBG, sWS = 4, 6, 8, 10, 12, 14, 16, 18
    sWAVE, sHKV, sJ, sSLOT, sT0, sT1, s16K, sSPIN, sC = 3, 20, 21, 22, 23, 24, 25, 26, 27
    sEX = 28
    sPC = 30
    sST = 40
    nst = [0]
    stamp_names = []
    def stamp(name):
        if stamps:
            A(f's_memrealtime s[{sST+2*nst[0]}:{sST+2*nst[0]+1}]')
            nst[0] += 1
            stamp_names.append(name)
    P = lambda r: f's[{r}:{r+1}]'
    vL = 0
    vA0, vA1, vA2, vA3 = 1, 2, 3, 4
    vKo, vVo, vLin, vTr = 5, 6, 7, 8
    vM0, vM1 = 9, 10
    vNM, vRI = 11, 12
    vMx = 13
    vF = 14
    vB0 = 15
    vQ = 16
    vX = 20
    vAcc = 24
    vT = 32
    vWo = 48
    vS = 64
    vE = 96
    vKr = 128
    R4 = lambda r: f'v[{r}:{r+3}]'
    R2 = lambda r: f'v[{r}:{r+1}]'

    g.label(NAME)
    A(f's_load_dwordx16 s[4:19], s[0:1], 0')
    A('s_cmp_ge_u32 s2, 0x100')
    A('s_cbranch_scc1 L_end')
    stamp('start')
    A(f'v_lshrrev_b32 v{vA0}, 6, v0')
    A(f'v_and_b32 v{vL}, 63, v0')
    A(f'v_readfirstlane_b32 s{sWAVE}, v{vA0}')
    A(f's_and_b32 s{sHKV}, s2, 7')
    A(f's_lshr_b32 s{sJ}, s2, 3')
    A(f's_lshl_b32 s{sSLOT}, s{sHKV}, 5')
    A(f's_add_u32 s{sSLOT}, s{sSLOT}, s{sJ}')
    A(f's_movk_i32 s{s16K}, 0x4000')
    g.C('lane offsets')
    A(f'v_lshlrev_b32 v{vLin}, 4, v{vL}')
    A(f'v_and_b32 v{vA3}, 16, v{vLin}')
    A(f'v_lshrrev_b32 v{vB0}, 1, v{vL}')
    A(f's_lshl_b32 s{sT0}, s{sWAVE}, 20')
    A(f's_lshl_b32 s{sT1}, s{sSLOT}, 5')
    A(f's_add_u32 s{sT0}, s{sT0}, s{sT1}')
    A(f'v_lshl_add_u32 v{vA0}, v{vB0}, 13, v{vA3}')
    A(f'v_add_u32 v{vA0}, s{sT0}, v{vA0}')
    A(f's_lshl_b32 s{sT0}, s{sHKV}, 19')
    A(f's_lshl_b32 s{sT1}, s{sWAVE}, 17')
    A(f's_add_u32 s{sT0}, s{sT0}, s{sT1}')
    A(f's_lshl_b32 s{sT1}, s{sJ}, 5')
    A(f's_add_u32 s{sT0}, s{sT0}, s{sT1}')
    A(f'v_lshl_add_u32 v{vA2}, v{vB0}, 10, v{vA3}')
    A(f'v_add_u32 v{vA2}, s{sT0}, v{vA2}')
    A(f'v_and_b32 v{vA3}, 15, v{vL}')
    A(f'v_lshrrev_b32 v{vB0}, 4, v{vL}')
    A(f's_lshl_b32 s{sT0}, s{sWAVE}, 8')
    A(f'v_lshlrev_b32 v{vA1}, 10, v{vA3}')
    A(f'v_lshl_add_u32 v{vA1}, v{vB0}, 4, v{vA1}')
    A(f'v_add_u32 v{vA1}, s{sT0}, v{vA1}')
    A(f's_lshl_b32 s{sT1}, s{sWAVE}, 12')
    A(f'v_lshlrev_b32 v{vTr}, 3, v{vA3}')
    A(f'v_lshl_add_u32 v{vTr}, v{vB0}, 8, v{vTr}')
    A(f'v_add_u32 v{vTr}, s{sT1}, v{vTr}')
    A(f's_mov_b32 m0, s{sT1}')
    A(f's_lshr_b32 s{sT0}, s{sJ}, 1')
    A(f's_lshl_b32 s{sT0}, s{sT0}, 23')
    A(f's_add_u32 s{sT0}, s{sT0}, s{sT1}')
    A(f's_lshl_b32 s{sT1}, s{sHKV}, 20')
    A(f's_add_u32 s{sT0}, s{sT0}, s{sT1}')
    A(f's_and_b32 s{sT1}, s{sJ}, 1')
    A(f's_lshl_b32 s{sT1}, s{sT1}, 17')
    A(f's_add_u32 s{sT0}, s{sT0}, s{sT1}')
    A(f's_add_u32 s{sT0}, s{sT0}, 0xc0000')
    A(f'v_add_u32 v{vVo}, s{sT0}, v{vLin}')
    A(f'v_bfe_u32 v{vMx}, v{vL}, 2, 2')
    A(f'v_and_b32 v{vKo}, 48, v{vLin}')
    A(f'v_lshl_add_u32 v{vKo}, v{vB0}, 6, v{vKo}')
    A(f'v_lshl_add_u32 v{vKo}, v{vMx}, 8, v{vKo}')
    A(f'v_add_u32 v{vKo}, s{sT0}, v{vKo}')
    vOst, vPcl, vLse = vS + 0, vS + 1, vS + 2
    def addr_O(dst):
        A(f's_lshl_b32 s{sT0}, s{sSLOT}, 10')
        A(f's_lshl_b32 s{sT1}, s{sWAVE}, 8')
        A(f's_add_u32 s{sT0}, s{sT0}, s{sT1}')
        A(f's_add_u32 s{sT0}, s{sT0}, {O_OFF:#x}')
        A(f'v_lshl_add_u32 v{dst}, v{vL}, 2, s{sT0}')
    def sbase_P():
        A(f's_lshl_b32 s{sT0}, s{sJ}, 3')
        A(f's_add_u32 s{sT0}, s{sT0}, s{sHKV}')
        A(f's_lshl_b32 s{sT0}, s{sT0}, 2')
        A(f's_add_u32 s{sT0}, s{sT0}, s{sWAVE}')
        A(f's_lshl_b32 s{sT0}, s{sT0}, 10')
        A(f's_add_u32 s{sT0}, s{sT0}, {P_OFF:#x}')
    def addr_LSE(dst):
        A(f's_lshr_b32 s{sT0}, s{sSLOT}, 1')
        A(f's_lshl_b32 s{sT0}, s{sT0}, 2')
        A(f's_add_u32 s{sT0}, s{sT0}, s{sWAVE}')
        A(f's_lshl_b32 s{sT0}, s{sT0}, 1')
        A(f's_and_b32 s{sT1}, s{sJ}, 1')
        A(f's_add_u32 s{sT0}, s{sT0}, s{sT1}')
        A(f's_lshl_b32 s{sT0}, s{sT0}, 2')
        A(f's_add_u32 s{sT0}, s{sT0}, {LSE_OFF:#x}')
        A(f'v_mov_b32 v{dst}, s{sT0}')
    addr_O(vOst)
    sbase_P()
    A(f'v_add_u32 v{vPcl}, s{sT0}, v{vLin}')
    addr_LSE(vLse)
    A(f's_lshl_b32 s{sT0}, s{sWAVE}, 2')
    A(f's_lshl_b64 {P(sEX)}, 1, s{sT0}')
    for i in range(4):
        A(f'v_mov_b32 v{vS+4+i}, -1')
    A(f's_getpc_b64 {P(sPC)}')
    A(f'v_lshlrev_b32 v{vS+8}, 7, v{vL}')
    A('s_waitcnt lgkmcnt(0)')
    stamp('kernarg')
    g.C('wq slice -> LDS (32 rows x 32 B per instruction), x fragments')
    for i in range(4):
        g.vmem(f'global_load_lds_dwordx4 v{vA0}, {P(sWQ)} offset:{i*1024} {wnt}', 'wq')
        if i < 3:
            A(f'v_add_u32 v{vA0}, {262144-1024:#x}, v{vA0}')
    for s in range(4):
        g.vmem(f'global_load_dwordx4 {R4(vE+4*s)}, v{vA1}, {P(sX)} offset:{s*64} {xnt}', 'x')
    g.vmem(f'global_load_dword v{vS+9}, v{vS+8}, {P(sPC)}', 'code')
    g.C('clear the hand-off slots this wave will publish into')
    g.vmem(f'global_store_dword v{vOst}, v{vS+4}, {P(sWS)} sc1', 'clr')
    g.vmem(f'global_store_dwordx4 v{vPcl}, {R4(vS+4)}, {P(sWS)} sc1', 'clr')
    A(f's_mov_b64 exec, {P(sEX)}')
    g.vmem(f'global_store_dword v{vLse}, v{vS+4}, {P(sWS)} sc1', 'clr')
    A('s_mov_b64 exec, -1')
    A(f's_add_u32 m0, m0, {L_WO:#x}')
    A('s_nop 0')
    for i in range(4):
        g.vmem(f'global_load_lds_dwordx4 v{vA2}, {P(sWO)} offset:{i*1024} {wnt}', 'wo')
        if i < 3:
            A(f'v_add_u32 v{vA2}, {32768-1024:#x}, v{vA2}')

    kreg = lambda i: vKr + 4 * i
    def kload(i):
        g.vmem(f'global_load_dwordx4 {R4(kreg(i))}, v{vKo}, {P(sK)} offset:{(i%4)*1024} {nt}', f'k{i}')
        if i % 4 == 3 and i < 31:
            A(f'v_add_u32 v{vKo}, s{s16K}, v{vKo}')
    vreg = lambda i: vE + 4 * i if i < 8 else vKr + 4 * (i - 8)
    def vload(i):
        g.vmem(f'global_load_dwordx4 {R4(vreg(i))}, v{vVo}, {P(sV)} offset:{(i%4)*1024} {nt}', f'v{i}')
        if i % 4 == 3 and i < 31:
            A(f'v_add_u32 v{vVo}, s{s16K}, v{vVo}')

    for i in range(0, 4): kload(i)
    g.C('q projection: D[n][b] over this wave\'s 128 rows')
    A(f'v_lshl_add_u32 v{vA0}, s{sWAVE}, 10, v{vLin}')
    g.wait('clr')
    stamp('wq_landed')
    for s in range(4):
        for t in range(2):
            A(f'ds_read_b64_tr_b16 {R2(vE+16+4*s+2*t)}, v{vTr} offset:{L_WQ+s*1024+t*128}')
    for s in range(4):
        A(f's_waitcnt lgkmcnt({6-2*s})')
        A(f'v_mfma_f32_16x16x32_bf16 {R4(vT)}, {R4(vE+16+4*s)}, {R4(vE+4*s)}, {"0" if s == 0 else R4(vT)}')
    A(f'v_and_b32 v{vA3}, 15, v{vL}')
    A(f'v_lshrrev_b32 v{vB0}, 4, v{vL}')
    A(f's_lshl_b32 s{sT0}, s{sSLOT}, 9')
    A(f'v_lshlrev_b32 v{vA1}, 5, v{vA3}')
    A(f'v_lshl_add_u32 v{vA1}, v{vB0}, 3, v{vA1}')
    A(f'v_add_u32 v{vA1}, s{sT0}, v{vA1}')
    assert Q_OFF == 0
    A(f'v_mov_b32 v{vA2}, s{sSLOT}')
    A(f'v_mov_b32 v{vA3}, 1')
    A('s_nop 1')
    A(f'ds_write_b128 v{vA0}, {R4(vT)} offset:{L_RED}')
    A('s_waitcnt lgkmcnt(0)')
    A('s_barrier')
    A(f's_cmp_lg_u32 s{sWAVE}, 0')
    A('s_cbranch_scc1 L_noq')
    for u in range(1, 4):
        A(f'ds_read_b128 {R4(vT+4*u)}, v{vLin} offset:{L_RED+u*1024}')
    for u in range(1, 4):
        A(f's_waitcnt lgkmcnt({3-u})')
        for r in range(4):
            A(f'v_add_f32 v{vT+r}, v{vT+r}, v{vT+4*u+r}')
    A(f'v_cvt_pk_bf16_f32 v{vT+4}, v{vT}, v{vT+1}')
    A(f'v_cvt_pk_bf16_f32 v{vT+5}, v{vT+2}, v{vT+3}')
    A(f'global_store_dwordx2 v{vA1}, {R2(vT+4)}, {P(sWS)} sc1')
    g.label('L_noq')
    stamp('q_stored')
    for i in range(4, 4 + flag_lag): kload(i)
    A(f's_cmp_lg_u32 s{sWAVE}, 0')
    A('s_cbranch_scc1 L_noflag')
    A(f's_waitcnt vmcnt({flag_lag})')
    A('s_mov_b64 exec, 1')
    A(f'global_store_byte v{vA2}, v{vA3}, {P(sDBG)} sc1')
    A('s_mov_b64 exec, -1')
    g.label('L_noflag')
    stamp('flag_stored')
    A(f'v_and_b32 v{vA0}, 7, v{vL}')
    A(f's_lshl_b32 s{sT0}, s{sHKV}, 5')
    A(f'v_lshl_add_u32 v{vA0}, v{vA0}, 2, s{sT0}')
    A(f's_lshl_b32 s{sT0}, s{sHKV}, 14')
    A(f's_lshr_b32 s{sT1}, s{sJ}, 1')
    A(f's_lshl_b32 s{sT1}, s{sT1}, 5')
    A(f's_add_u32 s{sT0}, s{sT0}, s{sT1}')
    A(f'v_bfe_u32 v{vA1}, v{vL}, 1, 1')
    A(f'v_lshl_add_u32 v{vA1}, v{vB0}, 1, v{vA1}')
    A(f'v_lshl_add_u32 v{vA1}, v{vMx}, 3, v{vA1}')
    A(f'v_and_b32 v{vA2}, 16, v{vLin}')
    A(f'v_lshl_add_u32 v{vA1}, v{vA1}, 9, v{vA2}')
    A(f'v_add_u32 v{vA1}, s{sT0}, v{vA1}')
    A(f'v_and_b32 v{vA2}, 16, v{vLin}')
    A(f'v_mov_b32 v{vA3}, 0xffff')
    A(f'v_lshlrev_b32 v{vA3}, v{vA2}, v{vA3}')
    A(f'v_and_b32 v{vA2}, 2, v{vL}')
    A(f'v_cmp_eq_u32 vcc, 0, v{vA2}')
    A('s_nop 1')
    A(f'v_cndmask_b32 v{vM0}, 0, v{vA3}, vcc')
    A(f'v_sub_u32 v{vM1}, v{vA3}, v{vM0}')
    A(f'v_lshlrev_b32 v{vA3}, 6, v{vMx}')
    A(f's_lshl_b32 s{sT0}, s{sWAVE}, 4')
    A(f'v_lshl_add_u32 v{vMx}, v{vB0}, 2, v{vA3}')
    A(f'v_add_u32 v{vMx}, s{sT0}, v{vMx}')
    A(f's_mov_b32 s{sC}, {f32(128 ** -0.5 * 1.4426950408889634)}')
    A(f's_mov_b32 s{sSPIN}, 0')
    for i in range(4 + flag_lag, flag_at): kload(i)
    g.vmem(f'global_load_dword v{vF}, v{vA0}, {P(sDBG)} sc1', 'flag')
    for i in range(flag_at, 32): kload(i)
    g.C('wo fragments (landed long ago)')
    g.wait('flag')
    for s in range(4):
        for t in range(2):
            A(f'ds_read_b64_tr_b16 {R2(vWo+4*s+2*t)}, v{vTr} offset:{L_WO+s*1024+t*128}')
    A(f'v_cmp_ne_u32 vcc, 0x01010101, v{vF}')
    A('s_cbranch_vccnz L_slow_flag')
    g.label('L_flag_ok')
    stamp('flag_ok')
    g.vmem(f'global_load_dwordx4 {R4(vQ)}, v{vA1}, {P(sWS)} sc1', 'q')
    for i in range(0, 8): vload(i)
    g.wait('q')
    stamp('q_landed')
    g.C('QK^T: one MFMA per 4 keys, diagonal blocks summed by DPP')
    nv = 8
    def qk_mfma(c):
        for i in range(4):
            A(f'v_mfma_f32_16x16x32_bf16 {R4(vT+4*i)}, {R4(kreg(4*c+i))}, {R4(vQ)}, 0')
    for c in range(8):
        qk_mfma(c)
        if c % 2 == 1:
            vload(nv); nv += 1
            A('s_nop 3')
        else:
            A('s_nop 4')
        for r in range(4):
            for i in range(4):
                q = f'quad_perm:[{r},{r},{r},{r}] row_mask:0xf bank_mask:0xf'
                if r == 0:
                    A(f'v_mov_b32_dpp v{vS+4*c+i}, v{vT+4*i} {q}')
                else:
                    A(f'v_add_f32_dpp v{vS+4*c+i}, v{vT+4*i+r}, v{vS+4*c+i} {q}')
    g.C('row max over the workgroup')
    A(f'v_max3_f32 v{vT}, v{vS}, v{vS+1}, v{vS+2}')
    A(f'v_max3_f32 v{vT+1}, v{vS+3}, v{vS+4}, v{vS+5}')
    for i in range(6, 30, 4):
        A(f'v_max3_f32 v{vT}, v{vT}, v{vS+i}, v{vS+i+1}')
        A(f'v_max3_f32 v{vT+1}, v{vT+1}, v{vS+i+2}, v{vS+i+3}')
    A(f'v_max3_f32 v{vT}, v{vT}, v{vS+30}, v{vS+31}')
    A(f'v_max_f32 v{vT}, v{vT}, v{vT+1}')
    A(f'ds_write_b32 v{vMx}, v{vT} offset:{L_MAX}')
    vload(nv); nv += 1
    A('s_waitcnt lgkmcnt(0)')
    A('s_barrier')
    for u in range(4):
        A(f'ds_read_b128 {R4(vT+4*u)}, v{vA3} offset:{L_MAX+16*u}')
    vload(nv); nv += 1
    A('s_waitcnt lgkmcnt(0)')
    A(f'v_max3_f32 v{vT}, v{vT}, v{vT+1}, v{vT+2}')
    for i in range(3, 15, 2):
        A(f'v_max3_f32 v{vT}, v{vT}, v{vT+i}, v{vT+i+1}')
    A(f'v_max_f32 v{vT}, v{vT}, v{vT+15}')
    A(f'v_mul_f32 v{vNM}, s{sC}, v{vT}')
    for i in range(32):
        A(f'v_fma_f32 v{vS+i}, v{vS+i}, s{sC}, -v{vNM}')
    for i in range(32):
        A(f'v_exp_f32 v{vS+i}, v{vS+i}')
    vload(nv); nv += 1
    A(f'v_add_f32 v{vT}, v{vS}, v{vS+1}')
    A(f'v_add_f32 v{vT+1}, v{vS+2}, v{vS+3}')
    for i in range(4, 32, 2):
        A(f'v_add_f32 v{vT}, v{vT}, v{vS+i}')
        A(f'v_add_f32 v{vT+1}, v{vT+1}, v{vS+i+1}')
    A(f'v_add_f32 v{vT}, v{vT}, v{vT+1}')
    A(f'ds_write_b32 v{vMx}, v{vT} offset:{L_SUM}')
    vload(nv); nv += 1
    A('s_waitcnt lgkmcnt(0)')
    A('s_barrier')
    for u in range(4):
        A(f'ds_read_b128 {R4(vT+4*u)}, v{vA3} offset:{L_SUM+16*u}')
    addr_LSE(vA0)
    A('s_waitcnt lgkmcnt(0)')
    for i in range(8):
        A(f'v_add_f32 v{vT+i}, v{vT+i}, v{vT+8+i}')
    for i in range(4):
        A(f'v_add_f32 v{vT+i}, v{vT+i}, v{vT+4+i}')
    A(f'v_add_f32 v{vT}, v{vT}, v{vT+2}')
    A(f'v_add_f32 v{vT+1}, v{vT+1}, v{vT+3}')
    A(f'v_add_f32 v{vT}, v{vT}, v{vT+1}')
    A(f'v_rcp_f32 v{vRI}, v{vT}')
    A(f'v_log_f32 v{vT+1}, v{vT}')
    A(f'v_mov_b32 v{vT+2}, -2')
    A(f'v_add_f32 v{vT+1}, v{vT+1}, v{vNM}')
    A(f'v_min_u32 v{vT+1}, v{vT+1}, v{vT+2}')
    A(f's_mov_b64 exec, {P(sEX)}')
    g.vmem(f'global_store_dword v{vA0}, v{vT+1}, {P(sWS)} sc1', 'lse')
    A('s_mov_b64 exec, -1')
    stamp('softmax_done')
    assert nv == 16
    A(f'v_lshlrev_b32 v{vA0}, 2, v{vL}')
    g.vmem(f'global_load_dword v{vF}, v{vA0}, {P(sDBG)} sc1', 'flag2')
    g.C('PV: D[(h,e)][chunk] += Psel x V')
    def pv(i):
        x = vX + 2 * (i % 2)
        A(f'v_mul_f32 v{vS+i}, v{vS+i}, v{vRI}')
        A(f'v_cvt_pk_bf16_f32 v{vS+i}, v{vS+i}, v{vS+i}')
        A(f'v_and_b32 v{x}, v{vS+i}, v{vM0}')
        A(f'v_and_b32 v{x+1}, v{vS+i}, v{vM1}')
        g.wait(f'v{i}')
        A('s_nop 0')
        A(f'v_mfma_f32_16x16x16_bf16 {R4(vAcc)}, {R2(x)}, {R2(vreg(i))}, {"0" if i == 0 else R4(vAcc)}')
        A(f'v_mfma_f32_16x16x16_bf16 {R4(vAcc+4)}, {R2(x)}, {R2(vreg(i)+2)}, {"0" if i == 0 else R4(vAcc+4)}')
    ip = 0
    for m in range(8):
        vload(nv); nv += 1
        pv(ip); pv(ip + 1); ip += 2
    for m in range(8):
        vload(nv); nv += 1
        pv(ip); ip += 1
    assert nv == 32 and ip == 24
    stamp('v_issued')
    g.C('addresses for the tail')
    vMW, vMR, vOs, vOl, vLl, vPs, vPl, vOut = vT, vT+1, vT+2, vT+3, vT+4, vT+5, vT+6, vT+7
    vN2 = vT + 8
    A(f'v_mov_b32 v{vN2}, -2')
    A(f'v_lshl_add_u32 v{vMW}, s{sWAVE}, 11, v{vLin}')
    A(f'v_lshrrev_b32 v{vA0}, 2, v{vL}')
    A(f'v_lshlrev_b32 v{vMR}, 4, v{vA0}')
    A(f'v_bfe_u32 v{vA0}, v{vL}, 1, 1')
    A(f'v_lshl_add_u32 v{vMR}, v{vA0}, 10, v{vMR}')
    A(f'v_and_b32 v{vA0}, 1, v{vL}')
    A(f'v_lshl_add_u32 v{vMR}, v{vA0}, 3, v{vMR}')
    A(f'v_lshl_add_u32 v{vMR}, s{sWAVE}, 8, v{vMR}')
    addr_O(vOs)
    A(f'v_and_b32 v{vA0}, 15, v{vL}')
    A(f's_lshl_b32 s{sT0}, s{sHKV}, 15')
    A(f's_lshl_b32 s{sT1}, s{sWAVE}, 8')
    A(f's_add_u32 s{sT0}, s{sT0}, s{sT1}')
    A(f's_add_u32 s{sT0}, s{sT0}, {O_OFF:#x}')
    A(f'v_lshl_add_u32 v{vOl}, v{vA0}, 11, s{sT0}')
    A(f'v_lshl_add_u32 v{vOl}, v{vB0}, 4, v{vOl}')
    A(f's_lshl_b32 s{sT0}, s{sHKV}, 9')
    A(f's_lshl_b32 s{sT1}, s{sWAVE}, 3')
    A(f's_add_u32 s{sT0}, s{sT0}, s{sT1}')
    A(f's_add_u32 s{sT0}, s{sT0}, {LSE_OFF:#x}')
    A(f'v_lshl_add_u32 v{vLl}, v{vA0}, 5, s{sT0}')
    sbase_P()
    A(f'v_lshl_add_u32 v{vPs}, v{vA0}, 6, s{sT0}')
    A(f'v_lshl_add_u32 v{vPs}, v{vB0}, 4, v{vPs}')
    A(f's_lshl_b32 s{sT0}, s{sJ}, 15')
    A(f's_lshl_b32 s{sT1}, s{sHKV}, 7')
    A(f's_add_u32 s{sT0}, s{sT0}, s{sT1}')
    A(f's_add_u32 s{sT0}, s{sT0}, {P_OFF:#x}')
    A(f'v_lshrrev_b32 v{vA0}, 3, v{vL}')
    A(f'v_lshl_add_u32 v{vPl}, v{vA0}, 12, s{sT0}')
    A(f'v_and_b32 v{vA0}, 0x70, v{vLin}')
    A(f'v_add_u32 v{vPl}, v{vPl}, v{vA0}')
    A(f's_lshl_b32 s{sT0}, s{sHKV}, 11')
    A(f's_lshl_b32 s{sT1}, s{sJ}, 5')
    A(f's_add_u32 s{sT0}, s{sT0}, s{sT1}')
    A(f'v_bfe_u32 v{vA0}, v{vL}, 2, 1')
    A(f'v_lshl_add_u32 v{vOut}, v{vA0}, 10, s{sT0}')
    A(f'v_and_b32 v{vA0}, 3, v{vL}')
    A(f'v_lshl_add_u32 v{vOut}, v{vA0}, 3, v{vOut}')
    A(f'v_bfe_u32 v{vA0}, v{vL}, 4, 1')
    A(f'v_lshl_add_u32 v{vOut}, v{vA0}, 2, v{vOut}')
    A(f'v_lshrrev_b32 v{vA0}, 5, v{vL}')
    A(f'v_lshl_add_u32 v{vOut}, v{vA0}, 1, v{vOut}')
    for i in range(24, 32): pv(i)
    stamp('pv_done')
    g.C('merge the four waves, publish o (bf16)')
    A('s_nop 6')
    A(f'ds_write_b128 v{vMW}, {R4(vAcc)} offset:{L_MRG}')
    A(f'ds_write_b128 v{vMW}, {R4(vAcc+4)} offset:{L_MRG+1024}')
    A('s_waitcnt lgkmcnt(0)')
    A('s_barrier')
    for u in range(4):
        A(f'ds_read_b64 {R2(vS+2*u)}, v{vMR} offset:{L_MRG+u*2048}')
    A('s_waitcnt lgkmcnt(2)')
    A(f'v_add_f32 v{vS}, v{vS}, v{vS+2}')
    A(f'v_add_f32 v{vS+1}, v{vS+1}, v{vS+3}')
    A('s_waitcnt lgkmcnt(0)')
    A(f'v_add_f32 v{vS+4}, v{vS+4}, v{vS+6}')
    A(f'v_add_f32 v{vS+5}, v{vS+5}, v{vS+7}')
    A(f'v_add_f32 v{vS}, v{vS}, v{vS+4}')
    A(f'v_add_f32 v{vS+1}, v{vS+1}, v{vS+5}')
    A(f'v_cvt_pk_bf16_f32 v{vS}, v{vS}, v{vS+1}')
    A(f'v_min_u32 v{vS}, v{vS}, v{vN2}')
    A(f'global_store_dword v{vOs}, v{vS}, {P(sWS)} sc1')
    stamp('o_stored')
    g.C('hop 1: gather o^T fragments of head (hkv, wave) for all batches')
    vBo = vE
    vLs = vS + 8
    vCk = vS + 10
    g.label('L_poll1')
    for hf in range(2):
        for s in range(4):
            A(f'global_load_dwordx4 {R4(vBo+16*hf+4*s)}, v{vOl}, {P(sWS)} offset:{hf*1024+s*64} sc1')
    A(f'global_load_dwordx2 {R2(vLs)}, v{vLl}, {P(sWS)} sc1')
    A(f's_add_u32 s{sSPIN}, s{sSPIN}, 1')
    for f in range(8):
        A(f's_waitcnt vmcnt({8-f})')
        b = vBo + 4 * f
        if f == 0:
            A(f'v_max3_u32 v{vCk}, v{b}, v{b+1}, v{b+2}')
            A(f'v_max_u32 v{vCk}, v{vCk}, v{b+3}')
        else:
            A(f'v_max3_u32 v{vCk}, v{vCk}, v{b}, v{b+1}')
            A(f'v_max3_u32 v{vCk}, v{vCk}, v{b+2}, v{b+3}')
    A('s_waitcnt vmcnt(0)')
    A(f'v_max3_u32 v{vCk}, v{vCk}, v{vLs}, v{vLs+1}')
    A(f'v_cmp_eq_u32 vcc, -1, v{vCk}')
    A(f's_cmp_gt_u32 s{sSPIN}, {SPIN_MAX}')
    A('s_cbranch_scc1 L_end')
    A('s_and_b64 exec, exec, vcc')
    A('s_cbranch_scc1 L_poll1')
    A('s_mov_b64 exec, -1')
    stamp('hop1_done')
    vD0, vD1 = vAcc, vAcc + 4
    A(f'v_sub_f32 v{vS+12}, v{vLs+1}, v{vLs}')
    A(f'v_sub_f32 v{vS+13}, v{vLs}, v{vLs+1}')
    for s in range(4):
        A(f'v_mfma_f32_16x16x32_bf16 {R4(vD0)}, {R4(vWo+4*s)}, {R4(vBo+4*s)}, {"0" if s == 0 else R4(vD0)}')
        A(f'v_mfma_f32_16x16x32_bf16 {R4(vD1)}, {R4(vWo+4*s)}, {R4(vBo+16+4*s)}, {"0" if s == 0 else R4(vD1)}')
        if s == 0:
            A(f'v_exp_f32 v{vS+12}, v{vS+12}')
            A(f'v_exp_f32 v{vS+13}, v{vS+13}')
        if s == 1:
            A(f'v_add_f32 v{vS+12}, 1.0, v{vS+12}')
            A(f'v_add_f32 v{vS+13}, 1.0, v{vS+13}')
        if s == 2:
            A(f'v_rcp_f32 v{vS+12}, v{vS+12}')
            A(f'v_rcp_f32 v{vS+13}, v{vS+13}')
    A('s_nop 6')
    for r in range(4):
        A(f'v_mul_f32 v{vD0+r}, v{vD0+r}, v{vS+12}')
    for r in range(4):
        A(f'v_fmac_f32 v{vD0+r}, v{vD1+r}, v{vS+13}')
    for r in range(4):
        A(f'v_min_u32 v{vD0+r}, v{vD0+r}, v{vN2}')
    A(f'global_store_dwordx4 v{vPs}, {R4(vD0)}, {P(sWS)} sc1')
    stamp('p_stored')
    A(f's_cmp_lg_u32 s{sWAVE}, 0')
    A('s_cbranch_scc1 L_fin')
    g.C('hop 2 (wave 0): sum the 32 heads\' partial outputs')
    A(f'v_cmp_ne_u32 vcc, 0x01010101, v{vF}')
    A('s_cbranch_vccnz L_slow_flag2')
    g.label('L_poll2')
    for i in range(4):
        A(f'global_load_dwordx4 {R4(vE+4*i)}, v{vPl}, {P(sWS)} offset:{i*1024} sc1')
    A(f's_add_u32 s{sSPIN}, s{sSPIN}, 1')
    for f in range(4):
        A(f's_waitcnt vmcnt({3-f})')
        b = vE + 4 * f
        if f == 0:
            A(f'v_max3_u32 v{vCk}, v{b}, v{b+1}, v{b+2}')
            A(f'v_max_u32 v{vCk}, v{vCk}, v{b+3}')
        else:
            A(f'v_max3_u32 v{vCk}, v{vCk}, v{b}, v{b+1}')
            A(f'v_max3_u32 v{vCk}, v{vCk}, v{b+2}, v{b+3}')
    A(f'v_cmp_eq_u32 vcc, -1, v{vCk}')
    A(f's_cmp_gt_u32 s{sSPIN}, {SPIN_MAX}')
    A('s_cbranch_scc1 L_end')
    A('s_and_b64 exec, exec, vcc')
    A('s_cbranch_scc1 L_poll2')
    A('s_mov_b64 exec, -1')
    stamp('hop2_done')
    for r in range(4):
        A(f'v_add_f32 v{vE+r}, v{vE+r}, v{vE+4+r}')
    for r in range(4):
        A(f'v_add_f32 v{vE+8+r}, v{vE+8+r}, v{vE+12+r}')
    for r in range(4):
        A(f'v_add_f32 v{vE+r}, v{vE+r}, v{vE+8+r}')
    A('s_nop 1')
    A(f'v_permlane32_swap_b32 v{vE}, v{vE+1}')
    A(f'v_permlane32_swap_b32 v{vE+2}, v{vE+3}')
    A('s_nop 1')
    A(f'v_add_f32 v{vE}, v{vE}, v{vE+1}')
    A(f'v_add_f32 v{vE+2}, v{vE+2}, v{vE+3}')
    A('s_nop 1')
    A(f'v_permlane16_swap_b32 v{vE}, v{vE+2}')
    A('s_nop 1')
    A(f'v_add_f32 v{vE}, v{vE}, v{vE+2}')
    A('s_nop 1')
    A(f'v_add_f32_dpp v{vE}, v{vE}, v{vE} row_ror:8 row_mask:0xf bank_mask:0xf')
    A('s_mov_b32 exec_lo, 0x00ff00ff')
    A('s_mov_b32 exec_hi, 0x00ff00ff')
    A(f'v_cvt_pk_bf16_f32 v{vE}, v{vE}, v{vE}')
    A(f'global_store_short v{vOut}, v{vE}, {P(sOUT)} {out_sc}')
    if stamps:
        A('s_waitcnt vmcnt(0)')
    stamp('out_stored')
    g.label('L_fin')
    if stamps:
        A('s_mov_b64 exec, 1')
        A('s_waitcnt lgkmcnt(0)')
        A(f's_lshl_b32 s{sT0}, s2, 2')
        A(f's_add_u32 s{sT0}, s{sT0}, s{sWAVE}')
        A(f's_lshl_b32 s{sT0}, s{sT0}, 7')
        A(f's_add_u32 s{sT0}, s{sT0}, {STAMP_OFF:#x}')
        A(f'v_mov_b32 v1, s{sT0}')
        for i in range(nst[0]):
            A(f'v_mov_b32 v2, s{sST+2*i}')
            A(f'global_store_dword v1, v2, {P(sWS)} offset:{4*i}')
        A(f'v_mov_b32 v2, s{sSPIN}')
        A(f'global_store_dword v1, v2, {P(sWS)} offset:{4*30}')
        A(f's_getreg_b32 s{sT0}, hwreg(HW_REG_XCC_ID)')
        A(f'v_mov_b32 v2, s{sT0}')
        A(f'global_store_dword v1, v2, {P(sWS)} offset:{4*31}')
    g.label('L_end')
    A('s_endpgm')
    g.C('slow paths: flags not yet all set')
    g.label('L_slow_flag')
    A(f'global_load_dword v{vF}, v{vA0}, {P(sDBG)} sc1')
    A(f's_add_u32 s{sSPIN}, s{sSPIN}, 1')
    A(f's_cmp_gt_u32 s{sSPIN}, {SPIN_MAX}')
    A('s_cbranch_scc1 L_end')
    A('s_waitcnt vmcnt(0)')
    A(f'v_cmp_ne_u32 vcc, 0x01010101, v{vF}')
    A('s_cbranch_vccnz L_slow_flag')
    A('s_branch L_flag_ok')
    g.label('L_slow_flag2')
    A(f'v_lshlrev_b32 v{vA0}, 2, v{vL}')
    A(f'global_load_dword v{vF}, v{vA0}, {P(sDBG)} sc1')
    A(f's_add_u32 s{sSPIN}, s{sSPIN}, 1')
    A(f's_cmp_gt_u32 s{sSPIN}, {SPIN_MAX}')
    A('s_cbranch_scc1 L_end')
    A('s_waitcnt vmcnt(0)')
    A(f'v_cmp_ne_u32 vcc, 0x01010101, v{vF}')
    A('s_cbranch_vccnz L_slow_flag2')
    A('s_branch L_poll2')
    g.C('padding so that the code prefetch stays inside the section')
    A('.fill 1024, 4, 0xbf800000')

    txt = HEADER + f'; @launch grid=(256,1,1) block=(256,1,1) lds={L_END}\n'
    txt += '.amdgcn_target "amdgcn-amd-amdhsa--gfx950"\n.text\n'
    txt += f'.globl {NAME}\n.p2align 8\n.type {NAME},@function\n'
    txt += '\n'.join(g.L) + '\n'
    txt += f'''.section .rodata,"a"
.p2align 6
.amdhsa_kernel {NAME}
  .amdhsa_next_free_vgpr 256
  .amdhsa_next_free_sgpr {80 if stamps else 40}
  .amdhsa_accum_offset 256
  .amdhsa_group_segment_fixed_size 0
  .amdhsa_kernarg_size 64
  .amdhsa_user_sgpr_count 2
  .amdhsa_user_sgpr_kernarg_segment_ptr 1
  .amdhsa_system_sgpr_workgroup_id_x 1
  .amdhsa_float_denorm_mode_32 3
.end_amdhsa_kernel
'''
    return txt, stamp_names


if __name__ == '__main__':
    txt, _ = gen(stamps='--stamps' in sys.argv)
    sys.stdout.write(txt)
```

```python
import sys, struct
from gen1 import G, f32, HEADER, NAME

EPOCH_OFF, ML_OFF, O_OFF, P_OFF, QP_OFF, STAMP_OFF = 0x0, 0x8000, 0x40000, 0x80000, 0x180000, 0x1000000
L_WQ, L_WO, L_X, L_Q, L_MAX, L_SUM, L_END = 0, 16384, 32768, 36864, 37888, 38144, 38400
L_MRG, L_HOP = 0, 8192
SPIN_MAX = 400000


def gen(stamps=False, nt='nt', wnt='nt', xnt='', out_sc='', clears=True, codepf=True, k1=8, k2=12, wo_at=14, ml_at=24,
        q_at=32, nv0=8):
    g = G(); A = g.A
    sX, sK, sV, sWQ, sWO, sOUT, sDBG, sWS = 4, 6, 8, 10, 12, 14, 16, 18
    sWAVE, sHKV, sJ, sSLOT, sT0, sT1, s16K, sSPIN, sC = 3, 20, 21, 22, 23, 24, 25, 26, 27
    sE = 28
    sPC = 30
    sH = 16
    sTG = 32
    sBad = 36
    sDiag = 38
    sST = 40
    nst = [0]; stamp_names = []
    def stamp(name):
        if stamps:
            A(f's_memrealtime s[{sST+2*nst[0]}:{sST+2*nst[0]+1}]')
            nst[0] += 1; stamp_names.append(name)
    P = lambda r: f's[{r}:{r+1}]'
    vL = 0
    vA0, vA1, vA2, vA3 = 1, 2, 3, 4
    vKo, vVo, vLin, vG = 5, 6, 7, 8
    vM0, vM1 = 9, 10
    vNM, vTr = 11, 12
    vMx, vMr = 13, 14
    vB = 15
    vQ = 16
    vX = 20
    vAcc = 24
    vT = 32
    vWo = 48
    vS = 64
    vE = 96
    vKr = 128
    R4 = lambda r: f'v[{r}:{r+3}]'
    R2 = lambda r: f'v[{r}:{r+1}]'

    g.label(NAME)
    A('s_load_dwordx16 s[4:19], s[0:1], 0')
    A('s_cmp_ge_u32 s2, 0x100')
    A('s_cbranch_scc1 L_end')
    stamp('start')
    if codepf:
        A(f's_getpc_b64 {P(sPC)}')
        A(f'v_lshlrev_b32 v{vA1}, 5, v0')
        g.vmem(f'global_load_dword v{vA1}, v{vA1}, {P(sPC)} offset:1024', 'code')
    A(f'v_lshrrev_b32 v{vA0}, 6, v0')
    A(f'v_and_b32 v{vL}, 63, v0')
    A(f'v_readfirstlane_b32 s{sWAVE}, v{vA0}')
    A(f's_and_b32 s{sHKV}, s2, 7')
    A(f's_lshr_b32 s{sJ}, s2, 3')
    A(f's_lshl_b32 s{sSLOT}, s{sHKV}, 5')
    A(f's_add_u32 s{sSLOT}, s{sSLOT}, s{sJ}')
    A(f's_movk_i32 s{s16K}, 0x4000')
    A(f'v_lshlrev_b32 v{vLin}, 4, v{vL}')
    A(f'v_lshrrev_b32 v{vG}, 4, v{vL}')
    A(f'v_and_b32 v{vB}, 15, v{vL}')
    g.C('wq offset: kq<<20 + wave<<18 + hkv<<10 + cg<<7 + (l>>3)<<13 + (l&7)<<4')
    A(f's_and_b32 s{sC}, s{sJ}, 3')
    A(f's_lshl_b32 s{sT0}, s{sC}, 2')
    A(f's_add_u32 s{sT0}, s{sT0}, s{sWAVE}')
    A(f's_lshl_b32 s{sT0}, s{sT0}, 18')
    A(f's_and_b32 s{sT1}, s{sSLOT}, 0xfc')
    A(f's_lshl_b32 s{sT1}, s{sT1}, 5')
    A(f's_add_u32 s{sT0}, s{sT0}, s{sT1}')
    A(f'v_lshrrev_b32 v{vA2}, 3, v{vL}')
    A(f'v_and_b32 v{vA3}, 0x70, v{vLin}')
    A(f'v_lshl_add_u32 v{vA0}, v{vA2}, 13, v{vA3}')
    A(f'v_add_u32 v{vA0}, s{sT0}, v{vA0}')
    A(f'v_lshl_add_u32 v{vS+8}, v{vA2}, 10, v{vA3}')
    g.C('x offset (swizzled source): (4w+g)*1024 + kq*256 + ((p ^ (4w+g))*16)')
    A(f'v_lshl_add_u32 v{vA2}, s{sWAVE}, 2, v{vG}')
    A(f'v_xor_b32 v{vA3}, v{vA2}, v{vB}')
    A(f'v_lshlrev_b32 v{vA3}, 4, v{vA3}')
    A(f'v_lshl_add_u32 v{vA2}, v{vA2}, 10, v{vA3}')
    A(f'v_lshl_add_u32 v{vA2}, s{sC}, 8, v{vA2}')
    A(f's_lshl_b32 s{sT1}, s{sWAVE}, 12')
    A(f's_mov_b32 m0, s{sT1}')
    g.C('kv offset: (j>>1)<<23 + hkv<<20 + (j&1)<<17 + wave<<12 + 0xC0000')
    A(f's_lshr_b32 s{sT0}, s{sJ}, 1')
    A(f's_lshl_b32 s{sT0}, s{sT0}, 23')
    A(f's_add_u32 s{sT0}, s{sT0}, s{sT1}')
    A(f's_lshl_b32 s{sT1}, s{sHKV}, 20')
    A(f's_add_u32 s{sT0}, s{sT0}, s{sT1}')
    A(f's_and_b32 s{sT1}, s{sJ}, 1')
    A(f's_lshl_b32 s{sT1}, s{sT1}, 17')
    A(f's_add_u32 s{sT0}, s{sT0}, s{sT1}')
    A(f's_add_u32 s{sT0}, s{sT0}, 0xc0000')
    A(f'v_add_u32 v{vVo}, s{sT0}, v{vLin}')
    A(f'v_bfe_u32 v{vMx}, v{vL}, 2, 2')
    A(f'v_and_b32 v{vMr}, 48, v{vLin}')
    A(f'v_lshl_add_u32 v{vMr}, v{vG}, 6, v{vMr}')
    A(f'v_lshl_add_u32 v{vMr}, v{vMx}, 8, v{vMr}')
    A(f'v_add_u32 v{vKo}, s{sT0}, v{vMr}')
    def sbase_P():
        A(f's_and_b32 s{sT0}, s{sJ}, 28')
        A(f's_add_u32 s{sT0}, s{sT0}, s{sWAVE}')
        A(f's_lshl_b32 s{sT0}, s{sT0}, 3')
        A(f's_add_u32 s{sT0}, s{sT0}, s{sHKV}')
        A(f's_lshl_b32 s{sT0}, s{sT0}, 2')
        A(f's_and_b32 s{sT1}, s{sJ}, 3')
        A(f's_add_u32 s{sT0}, s{sT0}, s{sT1}')
        A(f's_lshl_b32 s{sT0}, s{sT0}, 10')
        A(f's_add_u32 s{sT0}, s{sT0}, {P_OFF:#x}')
    def addr_O(dst):
        A(f's_lshl_b32 s{sT0}, s{sSLOT}, 10')
        A(f's_add_u32 s{sT0}, s{sT0}, {O_OFF:#x}')
        A(f'v_add_u32 v{dst}, s{sT0}, v{vLin}')
    if clears:
        sbase_P()
        A(f'v_add_u32 v{vS+4}, s{sT0}, v{vLin}')
        addr_O(vS+5)
        A(f'v_lshl_add_u32 v{vS+5}, s{sWAVE}, 8, v{vS+5}')
        for i in range(4):
            A(f'v_mov_b32 v{vS+i}, -1')
    A(f's_lshl_b32 s{sT1}, s{sWAVE}, 10')
    A(f's_add_u32 s{sT1}, s{sT1}, {L_X:#x}')
    A('s_waitcnt lgkmcnt(0)')
    stamp('kernarg')
    A(f's_load_dwordx2 {P(sE)}, {P(sWS)}, {EPOCH_OFF:#x}')

    kreg = lambda i: vKr + 4 * i
    def kload(i):
        g.vmem(f'global_load_dwordx4 {R4(kreg(i))}, v{vKo}, {P(sK)} offset:{(i%4)*1024} {nt}', f'k{i}')
        if i % 4 == 3 and i < 31:
            A(f'v_add_u32 v{vKo}, s{s16K}, v{vKo}')
    vreg = lambda i: vE + 4 * i if i < 8 else vKr + 4 * (i - 8)
    def vload(i):
        g.vmem(f'global_load_dwordx4 {R4(vreg(i))}, v{vVo}, {P(sV)} offset:{(i%4)*1024} {nt}', f'v{i}')
        if i % 4 == 3 and i < 31:
            A(f'v_add_u32 v{vVo}, s{s16K}, v{vVo}')
    nk = [0]
    def kto(n):
        while nk[0] < n:
            kload(nk[0]); nk[0] += 1

    for i in range(4):
        g.vmem(f'global_load_lds_dwordx4 v{vA0}, {P(sWQ)} offset:{i*1024} {wnt}', 'wq')
        if i < 3:
            A(f'v_add_u32 v{vA0}, {65536-1024:#x}, v{vA0}')
    A(f's_mov_b32 m0, s{sT1}')
    A('s_nop 0')
    g.vmem(f'global_load_lds_dwordx4 v{vA2}, {P(sX)} {xnt}', 'x')
    if clears:
        g.C('clear the slots this workgroup publishes into later')
        g.vmem(f'global_store_dwordx4 v{vS+4}, {R4(vS)}, {P(sWS)} sc1', 'clr')
        A('s_mov_b64 exec, 0xffff')
        g.vmem(f'global_store_dwordx4 v{vS+5}, {R4(vS)}, {P(sWS)} sc1', 'clr')
        A('s_mov_b64 exec, -1')
    kto(4)
    g.C('transpose-read address (wq and wo tiles): g*1024 + r*128 + wave*32 + c*8')
    A(f'v_lshlrev_b32 v{vTr}, 7, v{vMx}')
    A(f'v_lshl_add_u32 v{vTr}, v{vG}, 10, v{vTr}')
    A(f'v_and_b32 v{vA0}, 3, v{vL}')
    A(f'v_lshl_add_u32 v{vTr}, v{vA0}, 3, v{vTr}')
    A(f'v_lshl_add_u32 v{vTr}, s{sWAVE}, 5, v{vTr}')
    g.C('x fragment read addresses: b*256 + ((g^b)*16 ^ 64 s)')
    A(f'v_xor_b32 v{vA0}, v{vB}, v{vG}')
    A(f'v_lshlrev_b32 v{vA0}, 4, v{vA0}')
    A(f'v_lshl_add_u32 v{vS+12}, v{vB}, 8, v{vA0}')
    for s in range(1, 4):
        A(f'v_xor_b32 v{vS+12+s}, {64*s}, v{vS+12}')
    g.C('q partial store address: QP_OFF + slot*4096 + b*256 + wave*64 + g*16')
    A(f's_lshl_b32 s{sT0}, s{sSLOT}, 12')
    A(f's_lshl_b32 s{sT1}, s{sWAVE}, 6')
    A(f's_add_u32 s{sT0}, s{sT0}, s{sT1}')
    A(f's_add_u32 s{sT0}, s{sT0}, {QP_OFF:#x}')
    A(f'v_lshl_add_u32 v{vA3}, v{vB}, 8, s{sT0}')
    A(f'v_lshl_add_u32 v{vA3}, v{vG}, 4, v{vA3}')
    A(f'v_mov_b32 v{vA2}, 0xfffffc00')
    kto(k1)
    A('s_waitcnt lgkmcnt(0)')
    g.C('launch tag = LCG step of the epoch words found in the workspace')
    A(f's_mul_i32 s{sE}, s{sE}, 1664525')
    A(f's_mul_i32 s{sE+1}, s{sE+1}, 1664525')
    A(f's_add_u32 s{sE}, s{sE}, 1013904223')
    A(f's_add_u32 s{sE+1}, s{sE+1}, 1013904223')
    A(f's_and_b32 s{sTG}, s{sE}, 0x3ff')
    A(f's_bfe_u32 s{sTG+1}, s{sE}, 0xa000a')
    A(f's_bfe_u32 s{sTG+2}, s{sE}, 0xa0014')
    A(f's_and_b32 s{sTG+3}, s{sE+1}, 0x3ff')
    g.wait('x')
    stamp('wq_landed')
    A('s_barrier')
    for s in range(4):
        for t in range(2):
            A(f'ds_read_b64_tr_b16 {R2(vE+16+4*s+2*t)}, v{vTr} offset:{L_WQ+s*4096+t*512}')
        A(f'ds_read_b128 {R4(vE+4*s)}, v{vS+12+s} offset:{L_X}')
    for s in range(4):
        A(f's_waitcnt lgkmcnt({9-3*s})')
        A(f'v_mfma_f32_16x16x32_bf16 {R4(vT)}, {R4(vE+16+4*s)}, {R4(vE+4*s)}, {"0" if s == 0 else R4(vT)}')
    kto(k2)
    A('s_nop 7')
    for r in range(4):
        A(f'v_and_or_b32 v{vT+r}, v{vT+r}, v{vA2}, s{sTG+r}')
    if clears: g.wait('clr')
    g.vmem(f'global_store_dwordx4 v{vA3}, {R4(vT)}, {P(sWS)} sc1', 'qst')
    stamp('q_stored')
    kto(wo_at)
    g.C('wo tile [128 rows of head h][64 cols] -> LDS')
    A(f's_lshl_b32 s{sT0}, s{sHKV}, 2')
    A(f's_add_u32 s{sT0}, s{sT0}, s{sC}')
    A(f's_lshl_b32 s{sT0}, s{sT0}, 2')
    A(f's_add_u32 s{sT0}, s{sT0}, s{sWAVE}')
    A(f's_lshl_b32 s{sT0}, s{sT0}, 15')
    A(f's_lshr_b32 s{sT1}, s{sJ}, 2')
    A(f's_lshl_b32 s{sT1}, s{sT1}, 7')
    A(f's_add_u32 s{sT0}, s{sT0}, s{sT1}')
    A(f's_lshl_b32 s{sT1}, s{sWAVE}, 12')
    A(f's_add_u32 m0, s{sT1}, {L_WO:#x}')
    A(f'v_add_u32 v{vA0}, s{sT0}, v{vS+8}')
    for i in range(4):
        g.vmem(f'global_load_lds_dwordx4 v{vA0}, {P(sWO)} offset:{i*1024} {wnt}', 'wo')
        if i < 3:
            A(f'v_add_u32 v{vA0}, {8192-1024:#x}, v{vA0}')
    g.C('q partial load addresses: QP_OFF + hkv<<17 + wave<<15 + i<<14 + kq<<12 + b*256 + c*16')
    vQa = vA2
    A(f's_lshl_b32 s{sT0}, s{sHKV}, 17')
    A(f's_lshl_b32 s{sT1}, s{sWAVE}, 15')
    A(f's_add_u32 s{sT0}, s{sT0}, s{sT1}')
    A(f's_lshr_b32 s{sT1}, s{sJ}, 1')
    A(f's_lshl_b32 s{sT1}, s{sT1}, 8')
    A(f's_add_u32 s{sT0}, s{sT0}, s{sT1}')
    A(f's_add_u32 s{sT0}, s{sT0}, {QP_OFF:#x}')
    A(f'v_lshl_add_u32 v{vQa}, v{vG}, 12, s{sT0}')
    A(f'v_lshl_add_u32 v{vQa}, v{vB}, 4, v{vQa}')
    A(f'v_add_u32 v{vQa+1}, s{s16K}, v{vQa}')
    g.C('q LDS write address: wave*256 + (row>>1)*128 + c*8 + (row&1)*4')
    A(f'v_lshrrev_b32 v{vA0}, 5, v{vL}')
    A(f'v_lshlrev_b32 v{vA1}, 3, v{vB}')
    A(f'v_lshl_add_u32 v{vA1}, v{vA0}, 7, v{vA1}')
    A(f'v_and_b32 v{vA0}, 1, v{vG}')
    A(f'v_lshl_add_u32 v{vA1}, v{vA0}, 2, v{vA1}')
    A(f'v_lshl_add_u32 v{vA1}, s{sWAVE}, 8, v{vA1}')
    g.C('selector masks')
    A(f'v_and_b32 v{vA0}, 16, v{vLin}')
    A(f'v_mov_b32 v{vM1}, 0xffff')
    A(f'v_lshlrev_b32 v{vM1}, v{vA0}, v{vM1}')
    A(f'v_and_b32 v{vA0}, 2, v{vL}')
    A(f'v_cmp_eq_u32 vcc, 0, v{vA0}')
    A(f's_mov_b32 s{sC}, {f32(128 ** -0.5 * 1.4426950408889634)}')
    A(f's_mov_b32 s{sSPIN}, 0')
    A(f'v_cndmask_b32 v{vM0}, 0, v{vM1}, vcc')
    A(f'v_sub_u32 v{vM1}, v{vM1}, v{vM0}')
    if stamps: A(f's_mov_b32 s{sDiag}, 0')
    kto(q_at)
    g.vmem(f'global_load_dwordx4 {R4(vT)}, v{vQa}, {P(sWS)} sc1', 'q')
    g.vmem(f'global_load_dwordx4 {R4(vT+4)}, v{vQa+1}, {P(sWS)} sc1', 'q')
    kto(32)
    stamp('k_issued')
    nv = 0
    while len(g.vm) - 1 - max(i for i, t in enumerate(g.vm) if t == 'q') < 8 and nv < 8:
        vload(nv); nv += 1
    g.wait('q')
    g.label('L_qcheck')
    for i in range(8):
        A(f'v_xor_b32 v{vT+i}, s{sTG+(i&3)}, v{vT+i}')
    A(f'v_or3_b32 v{vT+8}, v{vT}, v{vT+1}, v{vT+2}')
    A(f'v_or3_b32 v{vT+9}, v{vT+3}, v{vT+4}, v{vT+5}')
    A(f'v_or3_b32 v{vT+8}, v{vT+8}, v{vT+6}, v{vT+7}')
    A(f'v_or_b32 v{vT+8}, v{vT+8}, v{vT+9}')
    A(f'v_and_b32 v{vT+8}, 0x3ff, v{vT+8}')
    A(f'v_cmp_ne_u32 vcc, 0, v{vT+8}')
    A('s_cbranch_vccnz L_slow_q')
    for r in range(4):
        A(f'v_permlane32_swap_b32 v{vT+r}, v{vT+4+r}')
    for r in range(4):
        A(f'v_add_f32 v{vT+r}, v{vT+r}, v{vT+4+r}')
    A('s_nop 0')
    A(f'v_permlane16_swap_b32 v{vT}, v{vT+2}')
    A(f'v_permlane16_swap_b32 v{vT+1}, v{vT+3}')
    A('s_nop 0')
    A(f'v_add_f32 v{vT}, v{vT}, v{vT+2}')
    A(f'v_add_f32 v{vT+1}, v{vT+1}, v{vT+3}')
    A(f'v_cvt_pk_bf16_f32 v{vT}, v{vT}, v{vT+1}')
    A(f'ds_write_b32 v{vA1}, v{vT} offset:{L_Q}')
    while nv < 8:
        vload(nv); nv += 1
    A('s_waitcnt lgkmcnt(0)')
    A('s_barrier')
    A(f'ds_read_b128 {R4(vQ)}, v{vMr} offset:{L_Q}')
    for s in range(4):
        for t in range(2):
            A(f'ds_read_b64_tr_b16 {R2(vWo+4*s+2*t)}, v{vTr} offset:{L_WO+s*4096+t*512}')
    g.C('max/sum LDS addresses: read h*64, write h*64 + (wave*4+kk)*4')
    A(f'v_lshlrev_b32 v{vA0}, 6, v{vMx}')
    A(f's_lshl_b32 s{sT0}, s{sWAVE}, 4')
    A(f'v_lshl_add_u32 v{vMx}, v{vG}, 2, v{vA0}')
    A(f'v_add_u32 v{vMx}, s{sT0}, v{vMx}')
    g.wait('k31')
    A('s_waitcnt lgkmcnt(8)')
    A(f'v_mov_b32 v{vMr}, v{vA0}')
    stamp('q_landed')
    g.C('QK^T: one MFMA per 4 keys, diagonal blocks summed by DPP')
    for c in range(8):
        for i in range(4):
            A(f'v_mfma_f32_16x16x32_bf16 {R4(vT+4*i)}, {R4(kreg(4*c+i))}, {R4(vQ)}, 0')
        if c % 2 == 1:
            vload(nv); nv += 1
            A('s_nop 3')
        else:
            A('s_nop 4')
        for r in range(4):
            for i in range(4):
                q = f'quad_perm:[{r},{r},{r},{r}] row_mask:0xf bank_mask:0xf'
                if r == 0:
                    A(f'v_mov_b32_dpp v{vS+4*c+i}, v{vT+4*i} {q}')
                else:
                    A(f'v_add_f32_dpp v{vS+4*c+i}, v{vT+4*i+r}, v{vS+4*c+i} {q}')
    g.C('row max over the workgroup')
    A(f'v_max3_f32 v{vT}, v{vS}, v{vS+1}, v{vS+2}')
    A(f'v_max3_f32 v{vT+1}, v{vS+3}, v{vS+4}, v{vS+5}')
    for i in range(6, 30, 4):
        A(f'v_max3_f32 v{vT}, v{vT}, v{vS+i}, v{vS+i+1}')
        A(f'v_max3_f32 v{vT+1}, v{vT+1}, v{vS+i+2}, v{vS+i+3}')
    A(f'v_max3_f32 v{vT}, v{vT}, v{vS+30}, v{vS+31}')
    A(f'v_max_f32 v{vT}, v{vT}, v{vT+1}')
    A(f'ds_write_b32 v{vMx}, v{vT} offset:{L_MAX}')
    vload(nv); nv += 1
    A('s_waitcnt lgkmcnt(0)')
    A('s_barrier')
    for u in range(4):
        A(f'ds_read_b128 {R4(vT+4*u)}, v{vMr} offset:{L_MAX+16*u}')
    vload(nv); nv += 1
    A('s_waitcnt lgkmcnt(0)')
    A(f'v_max3_f32 v{vT}, v{vT}, v{vT+1}, v{vT+2}')
    for i in range(3, 15, 2):
        A(f'v_max3_f32 v{vT}, v{vT}, v{vT+i}, v{vT+i+1}')
    A(f'v_max_f32 v{vT}, v{vT}, v{vT+15}')
    A(f'v_mul_f32 v{vNM}, s{sC}, v{vT}')
    for i in range(32):
        A(f'v_fma_f32 v{vS+i}, v{vS+i}, s{sC}, -v{vNM}')
    for i in range(32):
        A(f'v_exp_f32 v{vS+i}, v{vS+i}')
    vload(nv); nv += 1
    A(f'v_add_f32 v{vT}, v{vS}, v{vS+1}')
    A(f'v_add_f32 v{vT+1}, v{vS+2}, v{vS+3}')
    for i in range(4, 32, 2):
        A(f'v_add_f32 v{vT}, v{vT}, v{vS+i}')
        A(f'v_add_f32 v{vT+1}, v{vT+1}, v{vS+i+1}')
    A(f'v_add_f32 v{vT}, v{vT}, v{vT+1}')
    A(f'ds_write_b32 v{vMx}, v{vT} offset:{L_SUM}')
    vload(nv); nv += 1
    A('s_waitcnt lgkmcnt(0)')
    A('s_barrier')
    g.C('wave 1 publishes (M*c, L) of this half: ML_OFF + slot*64 + h*16 (lanes 0,4,8,12 -> l*4)')
    A(f's_cmp_lg_u32 s{sWAVE}, 1')
    A('s_cbranch_scc1 L_noml')
    for u in range(4):
        A(f'ds_read_b128 {R4(vT+4*u)}, v{vMr} offset:{L_SUM+16*u}')
    A(f's_lshl_b32 s{sT0}, s{sSLOT}, 6')
    A(f's_add_u32 s{sT0}, s{sT0}, {ML_OFF:#x}')
    A(f'v_lshl_add_u32 v{vA0}, v{vL}, 2, s{sT0}')
    A('s_waitcnt lgkmcnt(0)')
    for i in range(8):
        A(f'v_add_f32 v{vT+i}, v{vT+i}, v{vT+8+i}')
    for i in range(4):
        A(f'v_add_f32 v{vT+i}, v{vT+i}, v{vT+4+i}')
    A(f'v_add_f32 v{vT}, v{vT}, v{vT+2}')
    A(f'v_add_f32 v{vT+1}, v{vT+1}, v{vT+3}')
    A(f'v_add_f32 v{vT+5}, v{vT}, v{vT+1}')
    A(f'v_mov_b32 v{vT+4}, v{vNM}')
    A(f'v_mov_b32 v{vT+6}, s{sE}')
    A(f'v_mov_b32 v{vT+7}, s{sE+1}')
    A('s_mov_b64 exec, 0x1111')
    A(f'global_store_dwordx4 v{vA0}, {R4(vT+4)}, {P(sWS)} sc1')
    A('s_mov_b64 exec, -1')
    g.label('L_noml')
    stamp('softmax_done')
    assert nv == 16
    g.C('PV: D[(h,e)][chunk] += Psel x V')
    def pv(i):
        x = vX + 2 * (i % 2)
        A(f'v_cvt_pk_bf16_f32 v{vS+i}, v{vS+i}, v{vS+i}')
        A(f'v_and_b32 v{x}, v{vS+i}, v{vM0}')
        A(f'v_and_b32 v{x+1}, v{vS+i}, v{vM1}')
        g.wait(f'v{i}')
        A('s_nop 0')
        A(f'v_mfma_f32_16x16x16_bf16 {R4(vAcc)}, {R2(x)}, {R2(vreg(i))}, {"0" if i == 0 else R4(vAcc)}')
        A(f'v_mfma_f32_16x16x16_bf16 {R4(vAcc+4)}, {R2(x)}, {R2(vreg(i)+2)}, {"0" if i == 0 else R4(vAcc+4)}')
    vLa, vLb, vLc = vS, vS + 4, vS + 8
    def ml_loads():
        A(f'global_load_dwordx4 {R4(vLa)}, v{vA1}, {P(sWS)} sc1')
        A(f'global_load_dwordx4 {R4(vLb)}, v{vA2}, {P(sWS)} sc1')
        A(f'global_load_dwordx4 {R4(vLc)}, v{vA3}, {P(sWS)} sc1')
    ip = 0
    for m in range(16):
        if nv == ml_at:
            assert ip >= 12
            g.C('wave 0: (M,L) of both halves for head l>>4, and one granule of each group (certifies their cleared slots)')
            A(f's_cmp_lg_u32 s{sWAVE}, 0')
            A('s_cbranch_scc1 L_nomlld')
            A(f's_lshl_b32 s{sT0}, s{sSLOT}, 6')
            A(f's_add_u32 s{sT0}, s{sT0}, {ML_OFF:#x}')
            A(f'v_lshl_add_u32 v{vA1}, v{vG}, 4, s{sT0}')
            A(f'v_xor_b32 v{vA2}, 64, v{vA1}')
            A(f's_lshl_b32 s{sT0}, s{sJ}, 6')
            A(f's_add_u32 s{sT0}, s{sT0}, {ML_OFF:#x}')
            A(f'v_and_b32 v{vA0}, 7, v{vL}')
            A(f'v_lshl_add_u32 v{vA3}, v{vA0}, 11, s{sT0}')
            ml_loads()
            g.label('L_nomlld')
        vload(nv); nv += 1
        pv(ip); ip += 1
        if m < 8:
            pv(ip); ip += 1
    assert nv == 32 and ip == 24
    stamp('v_issued')
    g.C('addresses for the tail')
    vMW, vOs, vOl, vHW, vPs, vPl, vOut, vN2 = vT, vT+1, vT+2, vT+3, vT+5, vT+6, vT+7, vT+8
    vHR = vT + 10
    vF = vT + 14
    A(f'v_mov_b32 v{vN2}, -2')
    A(f'v_lshl_add_u32 v{vMW}, s{sWAVE}, 11, v{vLin}')
    addr_O(vOs)
    A(f's_lshl_b32 s{sT0}, s{sHKV}, 15')
    A(f's_lshl_b32 s{sT1}, s{sWAVE}, 13')
    A(f's_add_u32 s{sT0}, s{sT0}, s{sT1}')
    A(f's_and_b32 s{sT1}, s{sJ}, 3')
    A(f's_lshl_b32 s{sT1}, s{sT1}, 8')
    A(f's_add_u32 s{sT0}, s{sT0}, s{sT1}')
    A(f's_add_u32 s{sT0}, s{sT0}, {O_OFF+4096:#x}')
    A(f'v_lshl_add_u32 v{vOl}, v{vG}, 10, s{sT0}')
    A(f'v_lshl_add_u32 v{vOl}, v{vB}, 4, v{vOl}')
    A(f'v_lshrrev_b32 v{vA0}, 5, v{vL}')
    A(f'v_lshl_add_u32 v{vA0}, s{sWAVE}, 2, v{vA0}')
    A(f'v_xor_b32 v{vA0}, v{vA0}, v{vB}')
    A(f'v_lshlrev_b32 v{vA0}, 4, v{vA0}')
    A(f'v_lshl_add_u32 v{vA0}, v{vG}, 8, v{vA0}')
    A(f'v_lshl_add_u32 v{vHW}, s{sWAVE}, 11, v{vA0}')
    A(f'v_xor_b32 v{vHW+1}, 32, v{vHW}')
    A(f'v_xor_b32 v{vA0}, v{vB}, v{vG}')
    A(f'v_lshlrev_b32 v{vA0}, 4, v{vA0}')
    A(f'v_lshl_add_u32 v{vHR}, v{vB}, 9, v{vA0}')
    for s in range(1, 4):
        A(f'v_xor_b32 v{vHR+s}, {64*s}, v{vHR}')
    sbase_P()
    A(f'v_lshl_add_u32 v{vPs}, v{vB}, 6, s{sT0}')
    A(f'v_lshl_add_u32 v{vPs}, v{vG}, 4, v{vPs}')
    A(f's_lshl_b32 s{sT0}, s{sJ}, 15')
    A(f's_lshl_b32 s{sT1}, s{sHKV}, 7')
    A(f's_add_u32 s{sT0}, s{sT0}, s{sT1}')
    A(f's_add_u32 s{sT0}, s{sT0}, {P_OFF:#x}')
    A(f'v_lshrrev_b32 v{vA0}, 3, v{vL}')
    A(f'v_lshl_add_u32 v{vPl}, v{vA0}, 12, s{sT0}')
    A(f'v_and_b32 v{vA0}, 0x70, v{vLin}')
    A(f'v_add_u32 v{vPl}, v{vPl}, v{vA0}')
    A(f's_lshl_b32 s{sT0}, s{sHKV}, 11')
    A(f's_lshl_b32 s{sT1}, s{sJ}, 5')
    A(f's_add_u32 s{sT0}, s{sT0}, s{sT1}')
    A(f'v_bfe_u32 v{vA0}, v{vL}, 2, 1')
    A(f'v_lshl_add_u32 v{vOut}, v{vA0}, 10, s{sT0}')
    A(f'v_and_b32 v{vA0}, 3, v{vL}')
    A(f'v_lshl_add_u32 v{vOut}, v{vA0}, 3, v{vOut}')
    A(f'v_bfe_u32 v{vA0}, v{vL}, 4, 1')
    A(f'v_lshl_add_u32 v{vOut}, v{vA0}, 2, v{vOut}')
    A(f'v_lshrrev_b32 v{vA0}, 5, v{vL}')
    A(f'v_lshl_add_u32 v{vOut}, v{vA0}, 1, v{vOut}')
    def ml_check():
        A(f'v_sub_f32 v{vF}, v{vLb}, v{vLa}')
        for r in (vLa, vLb, vLc):
            A(f'v_xor_b32 v{r+2}, s{sE}, v{r+2}')
            A(f'v_xor_b32 v{r+3}, s{sE+1}, v{r+3}')
        A(f'v_exp_f32 v{vF}, v{vF}')
        A(f'v_or3_b32 v{vA0}, v{vLa+2}, v{vLa+3}, v{vLb+2}')
        A(f'v_or3_b32 v{vA0}, v{vA0}, v{vLb+3}, v{vLc+2}')
        A(f'v_or_b32 v{vA0}, v{vA0}, v{vLc+3}')
        A(f'v_fma_f32 v{vF}, v{vF}, v{vLb+1}, v{vLa+1}')
        A(f'v_cmp_ne_u32 {P(sBad)}, 0, v{vA0}')
        A(f'v_rcp_f32 v{vF}, v{vF}')
        A('s_nop 0')
        A(f'v_mov_b32 v{vF+1}, v{vF}')
    did = False
    for i in range(24, 32):
        pv(i)
        if i >= ml_at and not did:
            ml_check(); did = True
    assert did
    stamp('pv_done')
    g.C('merge the four waves, publish o (bf16)')
    A(f's_cmp_eq_u32 s{sWAVE}, 0')
    A('s_cbranch_scc1 L_mrg0')
    A('s_nop 4')
    A(f'ds_write_b128 v{vMW}, {R4(vAcc)} offset:{L_MRG}')
    A(f'ds_write_b128 v{vMW}, {R4(vAcc+4)} offset:{L_MRG+1024}')
    A('s_waitcnt lgkmcnt(0)')
    A('s_barrier')
    A('s_branch L_mrg_done')
    g.label('L_mrg0')
    A('s_barrier')
    for u in range(1, 4):
        A(f'ds_read_b128 {R4(vE+8*u)}, v{vLin} offset:{L_MRG+u*2048}')
        A(f'ds_read_b128 {R4(vE+8*u+4)}, v{vLin} offset:{L_MRG+u*2048+1024}')
    A(f's_cmp_lg_u64 {P(sBad)}, 0')
    A('s_cbranch_scc1 L_slow_ml')
    g.label('L_ml_ok')
    for u in range(1, 4):
        for hh in range(2):
            A(f's_waitcnt lgkmcnt({5-2*(u-1)-hh})')
            for r in range(0, 4, 2):
                A(f'v_pk_add_f32 {R2(vAcc+4*hh+r)}, {R2(vAcc+4*hh+r)}, {R2(vE+8*u+4*hh+r)}')
    for r in range(4):
        A(f'v_pk_mul_f32 {R2(vAcc+2*r)}, {R2(vAcc+2*r)}, {R2(vF)}')
    for r in range(4):
        A(f'v_cvt_pk_bf16_f32 v{vE+r}, v{vAcc+2*r}, v{vAcc+2*r+1}')
    for r in range(4):
        A(f'v_min_u32 v{vE+r}, v{vE+r}, v{vN2}')
    A(f'global_store_dwordx4 v{vOs}, {R4(vE)}, {P(sWS)} sc1')
    g.label('L_mrg_done')
    stamp('o_stored')
    g.C('hop 1: this wave fetches 8 of the 32 o rows of head h')
    vH = vE + 8
    vCk = vA0
    g.label('L_poll1')
    A(f'global_load_dwordx4 {R4(vH)}, v{vOl}, {P(sWS)} offset:-4096 sc1')
    A(f'global_load_dwordx4 {R4(vH+4)}, v{vOl}, {P(sWS)} sc1')
    A(f's_add_u32 s{sSPIN}, s{sSPIN}, 1')
    A(f's_cmp_gt_u32 s{sSPIN}, {SPIN_MAX}')
    A('s_cbranch_scc1 L_end')
    A('s_waitcnt vmcnt(1)')
    A(f'v_max3_u32 v{vCk}, v{vH}, v{vH+1}, v{vH+2}')
    A(f'ds_write_b128 v{vHW}, {R4(vH)} offset:{L_HOP}')
    A('s_waitcnt vmcnt(0)')
    A(f'v_max3_u32 v{vCk}, v{vCk}, v{vH+3}, v{vH+4}')
    A(f'ds_write_b128 v{vHW+1}, {R4(vH+4)} offset:{L_HOP+1024}')
    A(f'v_max3_u32 v{vCk}, v{vCk}, v{vH+5}, v{vH+6}')
    A(f'v_max_u32 v{vCk}, v{vCk}, v{vH+7}')
    A(f'v_cmp_eq_u32 vcc, -1, v{vCk}')
    A('s_waitcnt lgkmcnt(0)')
    A('s_and_b64 exec, exec, vcc')
    A('s_cbranch_scc1 L_poll1')
    A('s_mov_b64 exec, -1')
    A('s_barrier')
    stamp('hop1_done')
    vBo = vKr
    for s in range(4):
        for hf in range(2):
            A(f'ds_read_b128 {R4(vBo+8*s+4*hf)}, v{vHR+s} offset:{L_HOP+hf*256}')
    vD0 = vAcc
    for s in range(4):
        for hf in range(2):
            A(f's_waitcnt lgkmcnt({7-2*s-hf})')
            A(f'v_mfma_f32_16x16x32_bf16 {R4(vD0)}, {R4(vWo+4*s)}, {R4(vBo+8*s+4*hf)}, {"0" if s + hf == 0 else R4(vD0)}')
    A('s_nop 7')
    for r in range(4):
        A(f'v_min_u32 v{vD0+r}, v{vD0+r}, v{vN2}')
    A(f'global_store_dwordx4 v{vPs}, {R4(vD0)}, {P(sWS)} sc1')
    stamp('p_stored')
    A(f's_cmp_lg_u32 s{sWAVE}, 0')
    A('s_cbranch_scc1 L_fin')
    g.C('hop 2 (wave 0): sum the 32 heads\' partial outputs')
    g.label('L_poll2')
    for i in range(4):
        A(f'global_load_dwordx4 {R4(vE+4*i)}, v{vPl}, {P(sWS)} offset:{i*1024} sc1')
    A(f's_add_u32 s{sSPIN}, s{sSPIN}, 1')
    A(f's_cmp_gt_u32 s{sSPIN}, {SPIN_MAX}')
    A('s_cbranch_scc1 L_end')
    for f in range(4):
        A(f's_waitcnt vmcnt({3-f})')
        b = vE + 4 * f
        if f == 0:
            A(f'v_max3_u32 v{vCk}, v{b}, v{b+1}, v{b+2}')
            A(f'v_max_u32 v{vCk}, v{vCk}, v{b+3}')
        else:
            A(f'v_max3_u32 v{vCk}, v{vCk}, v{b}, v{b+1}')
            A(f'v_max3_u32 v{vCk}, v{vCk}, v{b+2}, v{b+3}')
    A(f'v_cmp_eq_u32 vcc, -1, v{vCk}')
    A('s_nop 0')
    A('s_and_b64 exec, exec, vcc')
    A('s_cbranch_scc1 L_poll2')
    A('s_mov_b64 exec, -1')
    stamp('hop2_done')
    for r in range(0, 4, 2):
        A(f'v_pk_add_f32 {R2(vE+r)}, {R2(vE+r)}, {R2(vE+4+r)}')
        A(f'v_pk_add_f32 {R2(vE+8+r)}, {R2(vE+8+r)}, {R2(vE+12+r)}')
    for r in range(0, 4, 2):
        A(f'v_pk_add_f32 {R2(vE+r)}, {R2(vE+r)}, {R2(vE+8+r)}')
    A('s_nop 1')
    A(f'v_permlane32_swap_b32 v{vE}, v{vE+1}')
    A(f'v_permlane32_swap_b32 v{vE+2}, v{vE+3}')
    A('s_nop 0')
    A(f'v_add_f32 v{vE}, v{vE}, v{vE+1}')
    A(f'v_add_f32 v{vE+2}, v{vE+2}, v{vE+3}')
    A('s_nop 1')
    A(f'v_permlane16_swap_b32 v{vE}, v{vE+2}')
    A('s_nop 0')
    A(f'v_add_f32 v{vE}, v{vE}, v{vE+2}')
    A('s_nop 1')
    A(f'v_add_f32_dpp v{vE}, v{vE}, v{vE} row_ror:8 row_mask:0xf bank_mask:0xf')
    A('s_mov_b32 exec_lo, 0x00ff00ff')
    A('s_mov_b32 exec_hi, 0x00ff00ff')
    A(f'v_cvt_pk_bf16_f32 v{vE}, v{vE}, v{vE}')
    A(f'global_store_short v{vOut}, v{vE}, {P(sOUT)} {out_sc}')
    g.C('workgroup 0 advances the epoch: every wave of the launch has read it by now')
    A('s_cmp_lg_u32 s2, 0')
    A('s_cbranch_scc1 L_noepoch')
    A('s_mov_b64 exec, 1')
    A(f'v_mov_b32 v{vE+4}, s{sE}')
    A(f'v_mov_b32 v{vE+5}, s{sE+1}')
    A(f'v_mov_b32 v{vE+6}, {EPOCH_OFF}')
    A(f'global_store_dwordx2 v{vE+6}, {R2(vE+4)}, {P(sWS)}')
    g.label('L_noepoch')
    if stamps:
        A('s_waitcnt vmcnt(0)')
    stamp('out_stored')
    g.label('L_fin')
    if stamps:
        A('s_mov_b64 exec, 1')
        A('s_waitcnt lgkmcnt(0)')
        A(f's_lshl_b32 s{sT0}, s2, 2')
        A(f's_add_u32 s{sT0}, s{sT0}, s{sWAVE}')
        A(f's_lshl_b32 s{sT0}, s{sT0}, 7')
        A(f's_add_u32 s{sT0}, s{sT0}, {STAMP_OFF:#x}')
        A(f'v_mov_b32 v1, s{sT0}')
        for i in range(nst[0]):
            A(f'v_mov_b32 v2, s{sST+2*i}')
            A(f'global_store_dword v1, v2, {P(sWS)} offset:{4*i}')
        A(f'v_mov_b32 v2, s{sSPIN}')
        A(f'global_store_dword v1, v2, {P(sWS)} offset:{4*30}')
        A(f'v_mov_b32 v2, s{sDiag}')
        A(f'global_store_dword v1, v2, {P(sWS)} offset:{4*29}')
        A(f's_getreg_b32 s{sT0}, hwreg(HW_REG_XCC_ID)')
        A(f'v_mov_b32 v2, s{sT0}')
        A(f'global_store_dword v1, v2, {P(sWS)} offset:{4*31}')
    g.label('L_end')
    A('s_endpgm')
    g.C('slow paths: a producer has not published yet')
    g.label('L_slow_q')
    A(f'global_load_dwordx4 {R4(vT)}, v{vQa}, {P(sWS)} sc1')
    A(f'global_load_dwordx4 {R4(vT+4)}, v{vQa+1}, {P(sWS)} sc1')
    if stamps: A(f's_add_u32 s{sDiag}, s{sDiag}, 1')
    A(f's_add_u32 s{sSPIN}, s{sSPIN}, 1')
    A(f's_cmp_gt_u32 s{sSPIN}, {SPIN_MAX}')
    A('s_cbranch_scc1 L_end')
    A('s_waitcnt vmcnt(0)')
    A('s_branch L_qcheck')
    g.label('L_slow_ml')
    ml_loads()
    if stamps: A(f's_add_u32 s{sDiag}, s{sDiag}, 0x10000')
    A(f's_add_u32 s{sSPIN}, s{sSPIN}, 1')
    A(f's_cmp_gt_u32 s{sSPIN}, {SPIN_MAX}')
    A('s_cbranch_scc1 L_end')
    A('s_waitcnt vmcnt(0)')
    ml_check()
    A(f's_cmp_lg_u64 {P(sBad)}, 0')
    A('s_cbranch_scc1 L_slow_ml')
    A('s_branch L_ml_ok')
    g.C('padding so that the code prefetch stays inside the section')
    A('.fill 768, 4, 0xbf800000')

    txt = HEADER + f'; @launch grid=(256,1,1) block=(256,1,1) lds={L_END}\n'
    txt += '.amdgcn_target "amdgcn-amd-amdhsa--gfx950"\n.text\n'
    txt += f'.globl {NAME}\n.p2align 8\n.type {NAME},@function\n'
    txt += '\n'.join(g.L) + '\n'
    txt += f'''.section .rodata,"a"
.p2align 6
.amdhsa_kernel {NAME}
  .amdhsa_next_free_vgpr 256
  .amdhsa_next_free_sgpr {80 if stamps else 40}
  .amdhsa_accum_offset 256
  .amdhsa_group_segment_fixed_size 0
  .amdhsa_kernarg_size 64
  .amdhsa_user_sgpr_count 2
  .amdhsa_user_sgpr_kernarg_segment_ptr 1
  .amdhsa_system_sgpr_workgroup_id_x 1
  .amdhsa_float_denorm_mode_32 3
.end_amdhsa_kernel
'''
    return txt, stamp_names


if __name__ == '__main__':
    txt, _ = gen(stamps='--stamps' in sys.argv)
    sys.stdout.write(txt)
```
